```python
import torch

def _softmax(x, axis=-1):
    return torch.softmax(x, dim=axis)

def _gelu(x):
    return torch.nn.functional.gelu(x, approximate='tanh')

def _silu(x):
    return torch.nn.functional.silu(x)

def _sigmoid(x):
    return torch.sigmoid(x)

def _layernorm(x, axis=-1, eps=1e-05):
    m = x.mean(dim=axis, keepdim=True)
    v = x.var(dim=axis, keepdim=True, unbiased=False)
    return (x - m) / torch.sqrt(v + eps)

def _scatter_add(tgt, idx, src, axis=0):
    return tgt.clone().index_add_(axis, idx, src)

def _segment_sum(src, seg, n):
    out = torch.zeros((n,) + src.shape[1:], dtype=src.dtype)
    return out.index_add_(0, seg, src)

def _pad(x, pw):
    flat = tuple((v for pair in reversed(pw) for v in pair))
    return torch.nn.functional.pad(x, flat)
kernel_name = 'standalone__swin_window_attn__vision'

def setup_inputs():

    _w = lambda a: (lambda t: t.to(torch.bfloat16) if t.is_floating_point() else t)(torch.as_tensor(a))
    H = W = 224 // 7 * 7
    C, win = (192, 7)
    return {'x': _w((lambda *s: torch.randn(*s, dtype=torch.bfloat16) * 0.2)(1, H, W, C)), 'wqkv': _w((lambda *s: torch.randn(*s, dtype=torch.bfloat16) * 0.2)(C, 3 * C)), 'wo': _w((lambda *s: torch.randn(*s, dtype=torch.bfloat16) * 0.05)(C, C))}

def reference(x, wqkv, wo):
    B, H, W, C = x.shape
    win = 7
    nh, nw = (H // win, W // win)
    xw = (lambda x, *d: x.permute(*d))(x.reshape(B, nh, win, nw, win, C), 0, 1, 3, 2, 4, 5)
    xw = xw.reshape(B * nh * nw, win * win, C)
    qkv = xw @ wqkv
    q, k, v = (qkv[..., :C].clone(), qkv[..., C:2 * C].clone(), qkv[..., 2 * C:].clone())
    scale = C ** (-0.5)
    p = _softmax(torch.einsum('bqc,bkc->bqk', q, k) * scale, axis=-1)
    o = torch.einsum('bqk,bkc->bqc', p, v) @ wo
    o = (lambda x, *d: x.permute(*d))(o.reshape(B, nh, nw, win, win, C), 0, 1, 3, 2, 4, 5)
    return o.reshape(B, H, W, C)
```

```python
import re

def R(p, i, n=1):
    return f"{p}{i}" if n == 1 else f"{p}[{i}:{i+n-1}]"
def regs(p, i, n=1):
    return {f"{p}{k}" for k in range(i, i + n)}

class Reg:
    def __init__(self, p, i, n=1): self.p, self.i, self.n = p, i, n
    def __str__(self): return R(self.p, self.i, self.n)
    def set(self): return regs(self.p, self.i, self.n)
    def sub(self, k, n=1): return Reg(self.p, self.i + k, n)
def V(i, n=1): return Reg('v', i, n)
def Ac(i, n=1): return Reg('a', i, n)
def S(i, n=1): return Reg('s', i, n)

def _rs(x):
    if isinstance(x, Reg): return x.set()
    if isinstance(x, str) and x in ('vcc', 'exec', 'm0', 'scc'): return {x}
    return set()

class I:
    def __init__(self, text, kind, reads=(), writes=(), cost=1, tag=None, extra=None):
        self.text, self.kind, self.cost, self.tag, self.extra = text, kind, cost, tag, extra
        self.reads = set(); self.writes = set()
        for r in reads: self.reads |= _rs(r)
        for w in writes: self.writes |= _rs(w)
        self.creads = set()

def mfma(d, a, b, c):
    i = I(f"v_mfma_f32_16x16x32_bf16 {d}, {a}, {b}, {c}", 'mfma', [a, b, c], [d])
    i.creads = _rs(c); i.abreads = _rs(a) | _rs(b); i.d = d; i.c = c
    return i
def valu(op, d, *src, kind='valu', dreads=False, extra_w=(), extra_r=()):
    t = f"{op} {d}, " + ", ".join(str(s) for s in src)
    rd = list(src) + list(extra_r) + ([d] if dreads else [])
    return I(t, kind, rd, [d] + list(extra_w), cost=2 if kind == 'trans' else 1)
def trans(op, d, s): return valu(op, d, s, kind='trans')
def swap(op, a, b): return I(f"{op} {a}, {b}", 'perm', [a, b], [a, b])
def salu(op, d, *src):
    return I(f"{op} {d}, " + ", ".join(str(s) for s in src), 'salu', list(src), [d, 'scc'])
def dsr(d, addr, off=0, op=None):
    op = op or {1: 'ds_read_b32', 2: 'ds_read_b64', 4: 'ds_read_b128'}[d.n]
    return I(f"{op} {d}, {addr} offset:{off}", 'dsr', [addr], [d])
def dsw(addr, s, off=0):
    op = {1: 'ds_write_b32', 2: 'ds_write_b64', 4: 'ds_write_b128'}[s.n]
    return I(f"{op} {addr}, {s} offset:{off}", 'dsw', [addr, s], [])
def vld(d, voff, srd, soff=0, off=0, flags="", op=None, tag=None, dreads=False):
    op = op or {1: 'buffer_load_dword', 2: 'buffer_load_dwordx2', 4: 'buffer_load_dwordx4'}[d.n]
    return I(f"{op} {d}, {voff}, {srd}, {soff} offen offset:{off} {flags}".rstrip(), 'vld', [voff, srd, soff] + ([d] if dreads else []), [d], tag=tag)
def vst(s, voff, srd, soff=0, off=0, flags="", tag=None):
    op = {1: 'buffer_store_dword', 2: 'buffer_store_dwordx2', 4: 'buffer_store_dwordx4'}[s.n]
    i = I(f"{op} {s}, {voff}, {srd}, {soff} offen offset:{off} {flags}".rstrip(), 'vst', [s, voff, srd, soff], [], tag=tag)
    i.data = s.set() if s.n >= 3 else set()
    return i
def dma(voff, srd, soff=0, off=0, flags="", tag=None):
    return I(f"buffer_load_dwordx4 {voff}, {srd}, {soff} offen offset:{off} {flags} lds".replace("  ", " "), 'dma', [voff, srd, soff, 'm0'], [], tag=tag)
def raw(text, kind='other', reads=(), writes=()): return I(text, kind, reads, writes)
def wait_vm(tag): return I("", 'wait_vm', tag=tag)
def wait_lgkm0(): return I("s_waitcnt lgkmcnt(0)", 'wait_lgkm0')
def wait_vm0(): return I("s_waitcnt vmcnt(0)", 'wait_vm0')
def barrier(): return I("s_barrier", 'barrier')
def label(n): return I(f"{n}:", 'label')
def comment(t): return I(f"; {t}", 'label')

VALU_KINDS = ('valu', 'trans', 'perm')

def finalize(prog, stats=None, vm0=()):
    out = []
    pos = 0
    lv = {}; lt = {}; lm = {}; lc = {}; lst = {}; lsg = {}; lm0 = -100
    ldsq = []; vmq = [(set(), t) for t in vm0]
    nnop = 0; nwait = 0
    def emit(t, states=1):
        nonlocal pos
        out.append(t); pos += states
    for ins in prog:
        k = ins.kind
        if k == 'label':
            out.append(ins.text); continue
        if k == 'wait_vm':
            idx = [i for i, (d, tg) in enumerate(vmq) if tg == ins.tag]
            if idx:
                n = len(vmq) - 1 - idx[-1]
                emit(f"  s_waitcnt vmcnt({min(n,63)})"); vmq = vmq[idx[-1] + 1:] if n <= 63 else vmq[-63:]
            continue
        if k == 'wait_lgkm0':
            emit("  " + ins.text); ldsq = []; continue
        if k == 'wait_vm0':
            emit("  " + ins.text); vmq = []; continue
        touch = ins.reads | ins.writes
        w = []
        idx = [i for i, d in enumerate(ldsq) if d & touch]
        if idx:
            n = len(ldsq) - 1 - idx[-1]
            n2 = min(n, 15); w.append(f"lgkmcnt({n2})"); ldsq = ldsq[len(ldsq) - n2:] if n2 else []
        idx = [i for i, (d, tg) in enumerate(vmq) if d & touch]
        if idx:
            n = len(vmq) - 1 - idx[-1]
            n2 = min(n, 63); w.append(f"vmcnt({n2})"); vmq = vmq[len(vmq) - n2:] if n2 else []
        if w:
            emit("  s_waitcnt " + " ".join(w)); nwait += 1
        need = 0
        def req(tbl, rs, n):
            nonlocal need
            for r in rs:
                if r in tbl:
                    need = max(need, n - (pos - tbl[r] - 1))
        if k == 'mfma':
            req(lv, ins.reads, 2)
            req(lm, ins.abreads, 8)
            for r in ins.creads:
                if r in lm and lm[r + '_d'] != str(ins.c):
                    need = max(need, 6 - (pos - lm[r] - 1))
        elif k in VALU_KINDS:
            req(lm, touch, 8)
            req(lc, ins.writes, 3)
            req(lst, ins.writes, 2)
            if k != 'trans': req(lt, ins.reads, 1)
            if k == 'perm': req(lv, ins.reads, 2)
            req(lsg, ins.reads, 2)
            if 'readfirstlane' in ins.text or 'readlane' in ins.text: req(lv, ins.reads, 1)
        elif k in ('dsr', 'dsw', 'vld', 'vst', 'dma'):
            req(lm, touch, 8)
            req(lst, ins.writes, 1)
            if k in ('vld', 'vst', 'dma'): req(lsg, ins.reads, 5)
            if k == 'dma': need = max(need, 1 - (pos - lm0 - 1))
        if need > 0:
            nnop += need
            while need > 0:
                n = min(need, 16); emit(f"  s_nop {n-1}", n); need -= n
        p = pos
        emit("  " + ins.text)
        if k == 'mfma':
            for r in ins.writes: lm[r] = p; lm[r + '_d'] = str(ins.d)
            for r in ins.creads: lc[r] = p
        elif k in VALU_KINDS:
            for r in ins.writes:
                if r[0] in 'va' and r != 'vcc':
                    lv[r] = p; lm.pop(r, None)
                    if k == 'trans': lt[r] = p
                    else: lt.pop(r, None)
                else: lsg[r] = p
        elif k == 'salu':
            if 'm0' in ins.writes: lm0 = p
            for r in ins.writes: lsg.pop(r, None)
        if k == 'dsr': ldsq.append(set(ins.writes))
        elif k == 'dsw': ldsq.append(set())
        elif k == 'vld': vmq.append((set(ins.writes), ins.tag))
        elif k in ('vst', 'dma'):
            vmq.append((set(), ins.tag))
            if k == 'vst':
                for r in ins.data: lst[r] = p
        if k in ('dsr', 'vld'):
            for r in ins.writes: lm.pop(r, None); lv.pop(r, None); lt.pop(r, None)
    if stats is not None:
        stats['nop'] = nnop; stats['wait'] = nwait; stats['states'] = pos
    return out

class Side:
    def __init__(self, ins, after=-1, before=10**9):
        self.ins = ins if isinstance(ins, list) else [ins]
        self.after, self.before = after, before
        self.cost = sum(i.cost for i in self.ins)

def schedule(mf, streams, slots=2):
    out = []
    heads = [0] * len(streams)
    def force(idx):
        for si, st in enumerate(streams):
            last = -1
            for j in range(heads[si], len(st)):
                if st[j].before <= idx: last = j
            while heads[si] <= last:
                out.extend(st[heads[si]].ins); heads[si] += 1
    def fill(i, budget):
        prog = True
        while budget > 0 and prog:
            prog = False
            for si, st in enumerate(streams):
                if heads[si] < len(st) and st[heads[si]].after <= i and st[heads[si]].cost <= max(budget, 0) + (1 if budget == slots else 0):
                    out.extend(st[heads[si]].ins); budget -= st[heads[si]].cost; heads[si] += 1; prog = True
                    break
    fill(-1, 0)
    for i, m in enumerate(mf):
        force(i)
        out.append(m)
        fill(i, slots)
    for si, st in enumerate(streams):
        while heads[si] < len(st):
            out.extend(st[heads[si]].ins); heads[si] += 1
    return out
```

```python
import sys, struct, math
sys.path.insert(0, "gen")
from asmlib import *

def f2u(f): return struct.unpack("<I", struct.pack("<f", f))[0]
SCALE = f2u(192 ** -0.5 * math.log2(math.e))
NEG = f2u(-1e30)
XB, YB, PB, LDS_TOT = 0, 76800, 125952, 142336
OPT = dict(store_flags="", slots=2, stamp=False, xflags="")

def srd(s, lo, hi, nrec):
    return [salu("s_mov_b32", S(s), lo), salu("s_and_b32", S(s + 1), hi, "0xffff"),
            salu("s_mov_b32", S(s + 2), nrec), salu("s_mov_b32", S(s + 3), "0x00020000")]

def prep_kernel():
    L = []
    p = []
    p += [raw("s_load_dwordx4 s[4:7], s[0:1], 8"), raw("s_load_dwordx2 s[8:9], s[0:1], 40")]
    p += [raw("s_cmp_ge_u32 s2, 144"), raw("s_cbranch_scc1 L_prep_end")]
    p += [raw("s_cmp_ge_u32 s2, 72"), raw("s_cselect_b32 s24, 1, 0"),
          salu("s_mul_i32", S(25), S(24), 72), salu("s_sub_u32", S(25), S(2), S(25)),
          salu("s_mul_i32", S(26), S(25), 57), salu("s_lshr_b32", S(26), S(26), 10),
          salu("s_mul_i32", S(27), S(26), 18), salu("s_sub_u32", S(27), S(25), S(27)),
          salu("s_mul_i32", S(28), S(27), 43), salu("s_lshr_b32", S(28), S(28), 8),
          salu("s_mul_i32", S(29), S(28), 6), salu("s_sub_u32", S(29), S(27), S(29)),
          salu("s_mul_i32", S(30), S(24), 18), salu("s_add_u32", S(30), S(30), S(27)), salu("s_lshl_b32", S(30), S(30), 10),
          salu("s_mul_i32", S(31), S(26), 36864), salu("s_add_u32", S(30), S(30), S(31)),
          salu("s_lshl_b32", S(31), S(26), 5), salu("s_lshl_b32", S(32), S(28), 2), salu("s_add_u32", S(31), S(31), S(32)),
          salu("s_lshr_b32", S(32), S(26), 1), salu("s_lshl_b32", S(32), S(32), 5), salu("s_and_b32", S(33), S(26), 1),
          salu("s_lshl_b32", S(33), S(33), 2), salu("s_add_u32", S(32), S(32), S(33)), salu("s_add_u32", S(32), S(32), 128),
          salu("s_lshl_b32", S(33), S(26), 4), salu("s_add_u32", S(33), S(33), 128),
          raw("s_cmp_eq_u32 s24, 0"), raw("s_cselect_b32 s32, s32, s33"),
          raw("s_cmp_eq_u32 s28, 2"), raw("s_cselect_b32 s31, s32, s31"),
          raw("s_cselect_b32 s34, s24, 0"),
          ]
    n, g, pm, t = V(2), V(3), V(4), V(5)
    p += [valu("v_and_b32", n, 15, V(0)), valu("v_lshrrev_b32", g, 4, V(0)),
          valu("v_lshrrev_b32", t, 2, n), valu("v_and_b32", pm, 3, n), valu("v_lshl_add_u32", pm, t, 3, pm),
          ]
    p += [salu("s_lshl_b32", S(35), S(29), 5), valu("v_add_u32", t, S(35), pm), valu("v_mul_u32_u24", V(6), 1152, t),
          valu("v_lshl_add_u32", V(6), g, 4, V(6)), salu("s_mul_i32", S(36), S(24), 768),
          valu("v_lshlrev_b32", V(8), 4, V(0))]
    p += [raw("s_cmp_eq_u32 s34, 1"), raw("s_cselect_b64 vcc, -1, 0", 'salu', [], ['vcc']),
          valu("v_cndmask_b32", t, pm, n, 'vcc'), valu("v_add_u32", t, S(31), t)]
    p += [wait_lgkm0()]
    p += srd(12, S(4), S(5), 221184) + srd(16, S(6), S(7), 73728) + srd(20, S(8), S(9), 147456)
    A0 = lambda hb, k: V(16 + hb * 24 + k * 4, 4)
    B = lambda k: V(64 + k * 4, 4)
    p2 = []
    p += [salu("s_add_u32", S(37), S(36), 4 * 1152)]
    p += [raw("s_cmp_eq_u32 s24, 1"), raw("s_cbranch_scc1 L_prep_n")]
    L += finalize(p)
    def tail(scale):
        q = []
        D = [V(8 + 0, 4), V(12, 4)]
        D = [V(140, 4), V(144, 4)]
        for k in range(6):
            for hb in range(2):
                q.append(mfma(D[hb], A0(hb, k), B(k), D[hb] if k else 0))
        if scale:
            q.append(salu("s_mov_b32", S(38), hex(SCALE)))
            for hb in range(2):
                for r in range(4): q.append(valu("v_mul_f32", D[hb].sub(r), S(38), D[hb].sub(r)))
        o = V(148, 4)
        for hb in range(2):
            for h in range(2):
                q.append(valu("v_cvt_pk_bf16_f32", o.sub(hb * 2 + h), D[hb].sub(2 * h), D[hb].sub(2 * h + 1)))
        q.append(vst(o, V(8), S(20, 4), S(30)))
        q.append(raw("s_endpgm"))
        return q
    q = [valu("v_mul_u32_u24", V(7), 1152, t), valu("v_lshl_add_u32", V(7), g, 4, V(7))]
    for k in range(6):
        q += [vld(A0(0, k), V(6), S(12, 4), S(36), 64 * k), vld(A0(1, k), V(6), S(12, 4), S(37), 64 * k),
              vld(B(k), V(7), S(12, 4), 0, 384 + 64 * k)]
    L += finalize(q + tail(True))
    L.append("L_prep_n:")
    q = [valu("v_mul_u32_u24", V(7), 3072, g), valu("v_lshl_add_u32", V(7), t, 1, V(7))]
    for k in range(6):
        q += [salu("s_mov_b32", S(40 + k), 12288 * k)]
    for k in range(6):
        q += [vld(A0(0, k), V(6), S(12, 4), S(36), 64 * k), vld(A0(1, k), V(6), S(12, 4), S(37), 64 * k)]
        for e in range(8):
            q.append(vld(V(88 + k * 8 + e), V(7), S(16, 4), S(40 + k), 384 * e, op="buffer_load_ushort"))
    for k in range(6):
        for h in range(4):
            q.append(valu("v_lshl_or_b32", B(k).sub(h), V(88 + k * 8 + 2 * h + 1), 16, V(88 + k * 8 + 2 * h)))
    L += finalize(q + tail(False))
    L.append("L_prep_end:\n  s_endpgm")
    return L

LANE, N_, G_ = V(1), V(2), V(3)
XD = lambda i: V(10 + i)
WV = V(17)
XE, XO, XE2, XO2, XE12, XO12 = V(18), V(19), V(20), V(21), V(22), V(23)
YW1, YW2, YR, YL, PW, PR = V(24), V(25), V(26), V(27), V(28), V(29)
MA, MB = V(30), V(31)
TA = lambda T: V(32 + T)
DLT, BIG, SB = V(45), V(46), V(47)
VB = lambda j, T, n=2: V(48 + j * 16 + (T & 7) * 2, n)
ACC = lambda st, j: V(96 + st * 12 + j * 4, 4)
SA = lambda kt: V(168 + kt * 4, 4)
YF = lambda s: V(184 + s * 4, 4)
PF = lambda q, u: V(208 + (q * 2 + u) * 4, 4)
TM = lambda k, n=1: V(240 + k, n)
MF = lambda j, s: Ac((j * 6 + s) * 4, 4)
NF = lambda j, s: Ac(72 + (j * 6 + s) * 4, 4)
XF = lambda T, s: Ac(144 + (T & 3) * 24 + s * 4, 4)
SX, SW, SO = S(4, 4), S(8, 4), S(12, 4)
sWG, sV, sXB, s384, sM49, sM16128, s83328, sT = S(20), S(21), S(22), S(23), S(24), S(25), S(26), S(27)
sGE = lambda k: S(28 + 2 * (k - 1), 2)
sNEG = S(36)

def tokoff(dst, t, base, w=V(4), i=V(5)):
    return [valu("v_min_u32", t, 195, t),
            valu("v_mul_u32_u24", w, 1338, t), valu("v_lshrrev_b32", w, 16, w),
            valu("v_mad_i32_i24", i, w, sM49, t),
            valu("v_mul_u32_u24", i, 9363, i), valu("v_lshrrev_b32", i, 16, i),
            valu("v_mad_u32_u24", dst, t, s384, base),
            valu("v_mad_i32_i24", dst, w, sM16128, dst),
            valu("v_mad_u32_u24", dst, i, s83328, dst)]

def xdma(i, u):
    if i < 6:
        return [salu("s_add_u32", 'm0', sXB, XB + i * 4 * 3072 + u * 1024 - u * 128), dma(XD(i), SX, 0, u * 128, OPT['xflags'], tag=f"x{i}")]
    return [salu("s_mov_b32", 'm0', S(37)), dma(XD(6), SX, 0, 0, OPT['xflags'], tag="x6")]

def xread(T):
    r = []
    for s in range(6):
        if T == 12: b, off = (XE12, XO12)[s & 1], 0
        elif T >= 10: b, off = (XE2, XO2)[s & 1], (T - 10) * 6144
        else: b, off = (XE, XO)[s & 1], T * 6144
        r.append(dsr(XF(T, s), b, off + (s >> 1) * 1024))
    return r

def pk(d, a, b): return valu("v_cvt_pk_bf16_f32", d, a, b)

class Ctx:
    def __init__(self): self.nset = 0; self.mf = []; self.setuse = {}
    def newset(self):
        s = self.nset % 6; self.nset += 1; return s

def main_kernel():
    L = []
    p = []
    p += [raw("s_load_dwordx2 s[16:17], s[0:1], 0"), raw("s_load_dwordx2 s[18:19], s[0:1], 24"), raw("s_load_dwordx2 s[38:39], s[0:1], 40")]
    p += [raw("s_cmp_ge_u32 s2, 256"), raw("s_cbranch_scc1 L_end")]
    p += [valu("v_lshrrev_b32", V(6), 6, V(0)), valu("v_and_b32", LANE, 63, V(0)),
          salu("s_lshr_b32", sWG, S(2), 3), salu("s_and_b32", sT, S(2), 7),
          valu("v_readfirstlane_b32", sV, V(6)),
          salu("s_mul_i32", sWG, sWG, 7 * 86016), salu("s_mul_i32", sT, sT, 28 * 384), salu("s_add_u32", sWG, sWG, sT),
          salu("s_mov_b32", s384, 384), salu("s_mov_b32", sM49, -49), salu("s_mov_b32", sM16128, -16128), salu("s_mov_b32", s83328, 83328),
          salu("s_mul_i32", sXB, sV, 3072)]
    p += [valu("v_lshrrev_b32", G_, 4, LANE), valu("v_and_b32", V(7), 1, V(6)), valu("v_lshl_add_u32", V(7), V(7), 2, G_),
          valu("v_and_b32", V(8), 7, LANE), valu("v_xor_b32", V(7), V(7), V(8)), valu("v_lshlrev_b32", V(7), 4, V(7)),
          valu("v_add_u32", V(7), sWG, V(7)),
          valu("v_lshrrev_b32", V(9), 3, LANE), valu("v_lshl_add_u32", V(9), V(6), 3, V(9))]
    for i in range(2):
        p += [valu("v_add_u32", TM(0), 32 * i, V(9))] + tokoff(XD(i), TM(0), V(7))
    p += [valu("v_mul_u32_u24", WV, 36864, V(6)), valu("v_lshl_add_u32", WV, LANE, 4, WV)]
    for k in range(1, 9): p += [salu("s_mov_b32", S(40 + k), 4096 * k)]
    p += [wait_lgkm0()]
    p += srd(4, S(16), S(17), 19267584)
    for i in range(2):
        for u in range(3): p += xdma(i, u)
    p += srd(8, S(38), S(39), 147456)
    def wload(dst, f):
        o = f * 1024
        return vld(dst, WV, SW, S(40 + (o >> 12)) if o >= 4096 else 0, o & 4095)
    for s in range(6):
        for j in range(3): p.append(wload(MF(j, s), j * 6 + s))
    p += srd(12, S(18), S(19), 19267584)
    for i in range(2, 6):
        p += [valu("v_add_u32", TM(0), 32 * i, V(9))] + tokoff(XD(i), TM(0), V(7))
    p += [salu("s_min_u32", sT, sV, 2), salu("s_lshl_b32", S(37), sT, 10), salu("s_add_u32", S(37), S(37), XB + 24 * 3072),
          salu("s_lshl_b32", sT, sT, 7), salu("s_add_u32", sT, sT, sWG),
          valu("v_xor_b32", V(7), G_, V(8)), valu("v_lshlrev_b32", V(7), 4, V(7)), valu("v_add_u32", V(7), sT, V(7)),
          valu("v_lshrrev_b32", TM(0), 3, LANE), valu("v_add_u32", TM(0), 192, TM(0))] + tokoff(XD(6), TM(0), V(7))
    p += [valu("v_and_b32", N_, 15, LANE)]
    p += [valu("v_lshrrev_b32", V(7), 1, N_), valu("v_xor_b32", V(7), G_, V(7)),
          valu("v_lshl_add_u32", V(7), V(8), 3, V(7)) if False else valu("v_and_b32", V(8), 7, N_),
          valu("v_lshlrev_b32", V(8), 3, V(8)),
          valu("v_add_u32", V(4), V(8), V(7)), valu("v_xor_b32", V(5), 4, V(7)), valu("v_add_u32", V(5), V(8), V(5)),
          valu("v_lshlrev_b32", V(4), 4, V(4)), valu("v_lshlrev_b32", V(5), 4, V(5)),
          valu("v_lshrrev_b32", V(7), 3, N_), valu("v_mul_u32_u24", V(7), 3072, V(7)),
          valu("v_add_u32", XE, V(4), V(7)), valu("v_add_u32", XO, V(5), V(7)),
          valu("v_add_u32", XE2, 61440, XE), valu("v_add_u32", XO2, 61440, XO),
          valu("v_lshrrev_b32", V(7), 4, V(8)), valu("v_xor_b32", V(7), G_, V(7)),
          valu("v_add_u32", V(4), V(8), V(7)), valu("v_xor_b32", V(5), 4, V(7)), valu("v_add_u32", V(5), V(8), V(5)),
          valu("v_lshlrev_b32", V(4), 4, V(4)), valu("v_lshlrev_b32", V(5), 4, V(5)),
          valu("v_add_u32", XE12, XB + 24 * 3072, V(4)), valu("v_add_u32", XO12, XB + 24 * 3072, V(5))]
    assert XB == 0
    p += [valu("v_lshlrev_b32", V(4), 4, LANE), valu("v_add_u32", YL, YB, V(4)), valu("v_lshl_add_u32", YW1, V(6), 10, YL),
          valu("v_lshrrev_b32", V(5), 1, V(6)), valu("v_lshl_add_u32", YW2, V(5), 10, YL), valu("v_and_b32", V(5), 1, V(6)),
          valu("v_lshl_add_u32", YW2, V(5), 3, YW2), valu("v_add_u32", YW2, 4096, YW2),
          valu("v_add_u32", PR, PB, V(4)), valu("v_lshl_add_u32", PW, V(6), 11, PR)]
    p += [salu("s_mov_b32", sNEG, hex(NEG)), valu("v_mov_b32", V(4), sNEG),
          valu("v_cmp_eq_u32", 'vcc', 0, G_), valu("v_cndmask_b32", MA, 0, V(4), 'vcc'), valu("v_cndmask_b32", MB, V(4), 0, 'vcc') if False else
          raw("v_cndmask_b32_e64 v31, v4, 0, vcc", 'valu', [V(4), 'vcc'], [MB])]
    for k in range(1, 5): p.append(raw(f"v_cmp_le_u32_e64 {sGE(k)}, {k}, {N_}", 'valu', [N_], [sGE(k)]))
    p += [valu("v_lshl_add_u32", V(4), V(6), 2, G_), valu("v_lshlrev_b32", SB, 4, V(4)), valu("v_add_u32", SB, sWG, SB),
          valu("v_lshlrev_b32", V(4), 3, V(4)), valu("v_sub_u32", DLT, 256, V(4)), valu("v_mov_b32", BIG, "0x7f000000")]
    late = []
    for T in range(13):
        late.append([valu("v_add_u32", TM(8), 16 * T, N_)] + tokoff(TA(T), TM(8), SB, TM(9), TM(10)))
    for T in range(13): p += late[T]
    p += [wait_vm("x1"), barrier()]

    C = Ctx()
    def Ymf(T):
        st = C.newset()
        m = [mfma(ACC(st, j), MF(j, s), XF(T, s), ACC(st, j) if s else 0) for s in range(6) for j in range(3)]
        a, b, c = ACC(st, 0), ACC(st, 1), ACC(st, 2)
        post = [pk(a.sub(0), a.sub(0), a.sub(1)), pk(a.sub(1), a.sub(2), a.sub(3)), pk(a.sub(2), b.sub(0), b.sub(1)), pk(a.sub(3), b.sub(2), b.sub(3)),
                dsw(YW1, a, (T & 7) * 6144),
                pk(c.sub(0), c.sub(0), c.sub(1)), pk(c.sub(1), c.sub(2), c.sub(3)), dsw(YW2, c.sub(0, 2), (T & 7) * 6144)]
        return m, post
    def Vmf(T):
        st = C.newset()
        m = [mfma(ACC(st, j), XF(T, s), NF(j, s), ACC(st, j) if s else 0) for s in range(6) for j in range(3)]
        post = []
        for j in range(3):
            a = ACC(st, j)
            post += [pk(VB(j, T).sub(0), a.sub(0), a.sub(1)), pk(VB(j, T).sub(1), a.sub(2), a.sub(3))]
        return m, post
    def Omf(w, q):
        st = C.newset()
        m = [mfma(ACC(st, j), VB(j, 3 * w + 2 * u, 4), PF(q, u), ACC(st, j) if u else 0) for u in range(2) for j in range(3)]
        a, b, c = ACC(st, 0), ACC(st, 1), ACC(st, 2)
        T = 3 * w + q
        ad = TA(T); pre = []
        if q == 0 and w > 0:
            ad = b.sub(2); pre = [raw(f"v_cndmask_b32_e64 {ad}, {BIG}, {TA(T)}, {sGE(w)}", 'valu', [BIG, TA(T), sGE(w)], [ad])]
        if q == 3:
            ad = b.sub(2); pre = [raw(f"v_cndmask_b32_e64 {ad}, {TA(T)}, {BIG}, {sGE(w+1)}", 'valu', [BIG, TA(T), sGE(w + 1)], [ad])]
        post = [pk(a.sub(0), a.sub(0), a.sub(1)), pk(a.sub(1), a.sub(2), a.sub(3)), pk(a.sub(2), b.sub(0), b.sub(1)), pk(a.sub(3), b.sub(2), b.sub(3))] + pre + [
                vst(a, ad, SO, 0, 0, OPT['store_flags']),
                pk(c.sub(0), c.sub(0), c.sub(1)), pk(c.sub(1), c.sub(2), c.sub(3)), valu("v_add_u32", b.sub(3), ad, DLT),
                vst(c.sub(0, 2), b.sub(3), SO, 0, 0, OPT['store_flags'])]
        return m, post
    def Smf(w):
        m = []
        for s in range(6):
            for kt in (1, 2, 0, 3):
                c = SA(kt) if (s or kt == 3 or (kt == 0 and w > 0)) else 0
                m.append(mfma(SA(kt), XF(3 * w + kt, s), YF(s), c))
        init = []
        if w > 0:
            for r in range(4): init.append(valu("v_mov_b32", SA(0).sub(r), MA if r < w else 0))
        for r in range(4): init.append(valu("v_mov_b32", SA(3).sub(r), MB if r <= w else sNEG))
        return m, init
    def softmax(w):
        s = [V(168 + k) for k in range(16)]
        m, t = TM(0), TM(1)
        o = [valu("v_max3_f32", m, s[4], s[5], s[6])]
        rest = [7, 8, 9, 10, 11, 0, 1, 2, 3, 12, 13, 14]
        for k in range(0, 12, 2): o.append(valu("v_max3_f32", m, m, s[rest[k]], s[rest[k + 1]]))
        o.append(valu("v_max_f32", m, m, s[15]))
        for sw in ("v_permlane32_swap_b32", "v_permlane16_swap_b32"):
            o += [valu("v_mov_b32", t, m), [swap(sw, m, t), valu("v_max_f32", m, m, t)]]
        for k in range(0, 16, 2):
            d = V(168 + k, 2)
            o.append(raw(f"v_pk_add_f32 {d}, {d}, {TM(0,2)} op_sel_hi:[1,0] neg_lo:[0,1] neg_hi:[0,1]", 'valu', [d, m], [d]))
        for k in range(16): o.append(trans("v_exp_f32", s[k], s[k]))
        a = TM(2, 2)
        o.append(valu("v_pk_add_f32", a, V(168, 2), V(170, 2)))
        for k in range(4, 16, 2): o.append(valu("v_pk_add_f32", a, a, V(168 + k, 2)))
        o.append(valu("v_add_f32", m, a.sub(0), a.sub(1)))
        for sw in ("v_permlane32_swap_b32", "v_permlane16_swap_b32"):
            o += [valu("v_mov_b32", t, m), [swap(sw, m, t), valu("v_add_f32", m, m, t)]]
        o.append(trans("v_rcp_f32", m, m))
        for u in range(2):
            for k in range(8 * u, 8 * u + 8, 2):
                d = V(168 + k, 2)
                o.append(raw(f"v_pk_mul_f32 {d}, {d}, {TM(0,2)} op_sel_hi:[1,0]", 'valu', [d, m], [d]))
            for h in range(4): o.append(pk(s[8 * u + h], s[8 * u + 2 * h], s[8 * u + 2 * h + 1]))
            o.append(dsw(PW, V(168 + 8 * u, 4), (w & 1) * 8192 + u * 1024))
        return o

    LAT = 4
    class Seg:
        def __init__(self): self.mf = []; self.posts = []; self.rd = []; self.sm = []; self.ld = []; self.starts = []
        def add(self, mp, last_deadline=None):
            m, post = mp
            self.starts.append(len(self.mf))
            self.mf += m
            self.posts.append((len(self.mf) - 1 + LAT, post, len(self.starts) - 1))
        def build(self, carry):
            ps = list(carry)
            for aft, post, gi in self.posts:
                dl = self.starts[gi + 5] if gi + 5 < len(self.starts) else 10 ** 9
                ps += [Side(i, aft, dl) for i in post]
            return schedule(self.mf, [self.rd, self.sm, ps, self.ld], OPT['slots'])

    sg = Seg()
    for T in range(4):
        for k, r in enumerate(xread(T)): sg.rd.append(Side(r, -1, max(0, T * 18 + k * 3 - 24)))
    for T in range(4): sg.add(Ymf(T))
    for T in range(2): sg.add(Vmf(T))
    ld = []
    for i in (2, 3):
        for u in range(3): ld.append(xdma(i, u))
    for s in range(6):
        for j in range(3): ld.append([wload(NF(j, s), 18 + j * 6 + s)])
    for k, l in enumerate(ld): sg.ld.append(Side(l, -1, 2 * k))
    for k, l in enumerate([xdma(4, u) for u in range(3)]): sg.ld.append(Side(l, 60 + 6 * k, 100))
    p += sg.build([])
    p += [wait_vm("x3"), wait_lgkm0(), barrier()]
    for w in range(4):
        sg = Seg()
        pre = [salu("s_add_u32", sT, sV, 3 * w), salu("s_and_b32", sT, sT, 7), salu("s_mul_i32", sT, sT, 6144), valu("v_add_u32", YR, sT, YL)]
        bi = len(p) - 3
        p[bi:bi] = pre
        for s in range(6): sg.rd.append(Side(dsr(YF(s), YR, s * 1024), -1, 2 + s))
        sg.add(Vmf(3 * w + 2))
        sm, init = Smf(w)
        s0 = len(sg.mf)
        for i in init: sg.sm.append(Side(i, -1, s0 - 2))
        sg.mf += sm
        s1 = len(sg.mf)
        if w > 0:
            for q in range(4):
                for u in range(2): sg.rd.append(Side(dsr(PF(q, u), PR, ((w - 1) & 1) * 8192 + (q * 2 + u) * 1024), 8, s1 - 8 + 3 * (q * 2 + u)))
            for q in range(4): sg.add(Omf(w - 1, q))
        for i in softmax(w): sg.sm.append(Side(i, s1 - 1 + LAT))
        sg.add(Vmf(3 * w + 3))
        if w < 3:
            y0 = len(sg.mf)
            for d in range(3):
                for k, r in enumerate(xread(3 * w + 4 + d)): sg.rd.append(Side(r, s1 - 1 + 2 * (d * 6 + k), y0 + d * 18 + k * 3 - 12))
            for d in range(3): sg.add(Ymf(3 * w + 4 + d))
            sg.add(Vmf(3 * w + 4))
        if w == 0:
            for k, l in enumerate([xdma(5, u) for u in range(3)] + [xdma(6, 0)]): sg.ld.append(Side(l, 6 * k, 100))
        p += sg.build([])
        p += [wait_vm({0: "x4", 1: "x6"}.get(w, "none")), wait_lgkm0(), barrier()]
    sg = Seg()
    for q in range(4):
        for u in range(2): sg.rd.append(Side(dsr(PF(q, u), PR, 8192 + (q * 2 + u) * 1024), -1, 0))
    for q in range(4): sg.add(Omf(3, q))
    p += sg.build([])
    st = {}
    L += finalize(p, st)
    print("main stats", st, file=sys.stderr)
    L.append("L_end:\n  s_endpgm")
    return L

def kdesc(name, vg, acc):
    return f""".p2align 6
.amdhsa_kernel {name}
  .amdhsa_next_free_vgpr {vg}
  .amdhsa_next_free_sgpr 102
  .amdhsa_accum_offset {acc}
  .amdhsa_group_segment_fixed_size 0
  .amdhsa_kernarg_size 48
  .amdhsa_user_sgpr_count 2
  .amdhsa_user_sgpr_kernarg_segment_ptr 1
  .amdhsa_system_sgpr_workgroup_id_x 1
.end_amdhsa_kernel"""

def build(path):
    K = "standalone__swin_window_attn__vision_kernel"
    L = ["; swin window attention: prep (fold weights) + main",
         "; @launch kernel=prep_kernel grid=(144,1,1) block=(64,1,1) lds=0",
         f"; @launch kernel={K} grid=(256,1,1) block=(256,1,1) lds={LDS_TOT}",
         '.amdgcn_target "amdgcn-amd-amdhsa--gfx950"', ".text"]
    for nm, fn in (("prep_kernel", prep_kernel), (K, main_kernel)):
        L += [f".globl {nm}", ".p2align 8", f".type {nm},@function", f"{nm}:"] + fn()
    L += ['.section .rodata,"a"', kdesc("prep_kernel", 160, 160), kdesc(K, 512, 256)]
    open(path, "w").write("\n".join(L) + "\n")

if __name__ == "__main__":
    for a in sys.argv[2:]:
        k, v = a.split("=", 1)
        OPT[k] = type(OPT[k])(v) if not isinstance(OPT[k], bool) else v == "1"
    build(sys.argv[1])
```

```python
import sys, struct, math
sys.path.insert(0, "gen")
from asmlib import *

def f2u(f): return struct.unpack("<I", struct.pack("<f", f))[0]
SCALE = f2u(192 ** -0.5 * math.log2(math.e))
NEG = f2u(-1e30)
XB, YB, PB, LDS_TOT = 0, 76800, 125952, 142336
WSZ = 147456
OPT = dict(drop='', store_flags="", slots=2, stamp=False, xflags="", nxe=2, nxl=0, poll='v', wflags="sc1", tmo=4000,
           forcefb=0, sleep=1, stgap=10, lat=4, xbar=6, permute=0)

def srd(s, lo, hi, nrec):
    return [salu("s_mov_b32", S(s), lo), salu("s_and_b32", S(s + 1), hi, "0xffff"),
            salu("s_mov_b32", S(s + 2), nrec), salu("s_mov_b32", S(s + 3), "0x00020000")]

LANE, N_, G_, WID = V(1), V(2), V(3), V(6)
XD = lambda i: V(10 + i)
WV = V(17)
XE, XO, XE2, XO2, XE12, XO12 = V(18), V(19), V(20), V(21), V(22), V(23)
YW1, YW2, YR, YL, PW, PR = V(24), V(25), V(26), V(27), V(28), V(29)
MA, MB = V(30), V(31)
TA = lambda T: V(32 + T)
DLT, BIG, SB = V(45), V(46), V(47)
VB = lambda j, T, n=2: V(48 + j * 16 + (T & 7) * 2, n)
ACC = lambda st, j: V(96 + st * 12 + j * 4, 4)
SA = lambda kt: V(168 + kt * 4, 4)
YF = lambda s: V(184 + s * 4, 4)
PF = lambda q, u: V(208 + (q * 2 + u) * 4, 4)
TM = lambda k, n=1: V(240 + k, n)
MF = lambda j, s: Ac((j * 6 + s) * 4, 4)
NF = lambda j, s: Ac(72 + (j * 6 + s) * 4, 4)
XF = lambda T, s: Ac(144 + (T & 3) * 24 + s * 4, 4)
SX, SW, SO, SQ, SWO, SD = S(4, 4), S(8, 4), S(12, 4), S(16, 4), S(56, 4), S(92, 4)
sWG, sV, sXB, s384, sM49, sM16128, s83328, sT = S(20), S(21), S(22), S(23), S(24), S(25), S(26), S(27)
sGE = lambda k: S(28 + 2 * (k - 1), 2)
sNEG, sM6, sJ, sOB, sFO, sCNT, sF, sMODE = S(36), S(37), S(38), S(39), S(40), S(41), S(42), S(43)
sK = lambda k: S(96 + k - 1) if k <= 6 else S(3) if k == 7 else S(60)
sj, ss, sb, so, sa0, su = S(62), S(63), S(64), S(65), S(66), S(67)
STB = 68

def tokoff(dst, t, base, w=V(4), i=V(5)):
    return [valu("v_min_u32", t, 195, t),
            valu("v_mul_u32_u24", w, 1338, t), valu("v_lshrrev_b32", w, 16, w),
            valu("v_mad_i32_i24", i, w, sM49, t),
            valu("v_mul_u32_u24", i, 9363, i), valu("v_lshrrev_b32", i, 16, i),
            valu("v_mad_u32_u24", dst, t, s384, base),
            valu("v_mad_i32_i24", dst, w, sM16128, dst),
            valu("v_mad_u32_u24", dst, i, s83328, dst)]

def xdma(i, u):
    if i < 6:
        return [salu("s_add_u32", 'm0', sXB, XB + i * 4 * 3072 + u * 1024 - u * 128), dma(XD(i), SX, 0, u * 128, OPT['xflags'], tag=f"x{i}")]
    return [salu("s_mov_b32", 'm0', sM6), dma(XD(6), SX, 0, 0, OPT['xflags'], tag="x6")]
def xgroup(i): return [xdma(i, u) for u in range(3 if i < 6 else 1)]
def flat(l): return [y for x in l for y in x]

def xread1(T, s):
    if T == 12: b, off = (XE12, XO12)[s & 1], 0
    elif T >= 10: b, off = (XE2, XO2)[s & 1], (T - 10) * 6144
    else: b, off = (XE, XO)[s & 1], T * 6144
    return dsr(XF(T, s), b, off + (s >> 1) * 1024)

def pk(d, a, b): return valu("v_cvt_pk_bf16_f32", d, a, b)

STN = [0]
def stamp():
    if not OPT['stamp'] or STN[0] >= 12: return []
    k = STN[0]; STN[0] += 1
    return [raw(f"s_memrealtime s[{STB+2*k}:{STB+1+2*k}]"), wait_lgkm0()]
def stamp_out():
    if not OPT['stamp']: return []
    o = []
    for k in range(16): o.append(valu("v_mov_b32", V(96 + k), S(STB + 2 * k) if k < STN[0] else (sMODE if k == 15 else 0)))
    o += [salu("s_lshl_b32", sT, S(2), 2), salu("s_add_u32", sT, sT, sV), salu("s_lshl_b32", sT, sT, 6), salu("s_add_u32", sT, sT, 0x3000000),
          valu("v_mov_b32", V(112), sT),
          valu("v_cmp_eq_u32", 'vcc', 0, LANE), raw("s_and_saveexec_b64 s[44:45], vcc"), raw("s_nop 4")]
    for k in range(4): o.append(vst(V(96 + 4 * k, 4), V(112), SW, 0, 16 * k))
    return o

PM, JA, JB, JL = TM(11), TM(12), TM(13), TM(14)
jA = lambda sx, hb, k: V(48 + (sx * 2 + hb) * 24 + k * 4, 4)
jG = lambda k, e: V(144 + k * 8 + e)
jB = lambda k: V(192 + k * 4, 4)
jD = lambda sx, hb: V(216 + (sx * 2 + hb) * 4, 4)
jO = lambda sx: V(232 + sx * 4, 4)

def job_m(early, late):
    q = [salu("s_mul_i32", sj, sJ, 43), salu("s_lshr_b32", sj, sj, 8), salu("s_mul_i32", ss, sj, 6), salu("s_sub_u32", ss, sJ, ss),
         salu("s_mul_i32", sa0, ss, 32 * 1152), salu("s_add_u32", su, sa0, 4 * 1152),
         salu("s_lshl_b32", sb, sV, 5), salu("s_lshl_b32", sT, sj, 2), salu("s_add_u32", sb, sb, sT),
         salu("s_lshr_b32", so, sV, 1), salu("s_lshl_b32", so, so, 5), salu("s_and_b32", sT, sV, 1), salu("s_lshl_b32", sT, sT, 2),
         salu("s_add_u32", so, so, sT), salu("s_add_u32", so, so, 128),
         raw(f"s_cmp_eq_u32 {sj}, 2"), raw(f"s_cselect_b32 {sb}, {so}, {sb}"), salu("s_mul_i32", sb, sb, 1152),
         salu("s_lshl_b32", so, sJ, 10), salu("s_add_u32", so, so, sOB)]
    for k in range(6):
        q += [vld(jA(0, 0, k), JA, SQ, sa0, 64 * k), vld(jB(k), JA, SQ, sb, 384 + 64 * k), vld(jA(0, 1, k), JA, SQ, su, 64 * k)]
    q += early
    for k in range(6):
        for hb in range(2): q.append(mfma(jD(0, hb), jA(0, hb, k), jB(k), jD(0, hb) if k else 0))
    q.append(salu("s_mov_b32", sT, hex(SCALE)))
    for hb in range(2):
        for r in range(4): q.append(valu("v_mul_f32", jD(0, hb).sub(r), sT, jD(0, hb).sub(r)))
    for hb in range(2):
        for h in range(2): q.append(pk(jO(0).sub(hb * 2 + h), jD(0, hb).sub(2 * h), jD(0, hb).sub(2 * h + 1)))
    q.append(vst(jO(0), JL, SW, so, 0, tag="jst"))
    q += late + [wait_vm("jst")]
    return q

def job_n(early, late):
    q = [salu("s_sub_u32", ss, sJ, 18), salu("s_mul_i32", sj, ss, 86), salu("s_lshr_b32", sj, sj, 8), salu("s_mul_i32", sT, sj, 3),
         salu("s_lshl_b32", so, ss, 11), salu("s_add_u32", so, so, sOB), salu("s_add_u32", so, so, 18 * 1024),
         salu("s_sub_u32", ss, ss, sT), salu("s_mul_i32", sa0, ss, 64 * 1152), salu("s_add_u32", sa0, sa0, 768),
         salu("s_mul_i32", sb, sV, 48), salu("s_lshl_b32", sT, sj, 2),
         raw(f"s_cmp_eq_u32 {sj}, 2"), raw(f"s_cselect_b32 {sT}, 32, {sT}"), raw("s_cselect_b64 vcc, -1, 0", 'salu', [], ['vcc']),
         salu("s_add_u32", sb, sb, sT),
         valu("v_cndmask_b32", JB, PM, N_, 'vcc'), valu("v_add_u32", JB, sb, JB),
         valu("v_mul_u32_u24", TM(15), 3072, G_), valu("v_lshl_add_u32", JB, JB, 1, TM(15))]
    for k in range(6):
        q.append(salu("s_mov_b32", su, 12288 * k))
        for e in range(8): q.append(vld(jG(k, e), JB, SWO, su, 384 * e, op="buffer_load_ushort"))
    for sx in range(2):
        for hb in range(2):
            q.append(salu("s_add_u32", su, sa0, (32 * sx + 4 * hb) * 1152))
            for k in range(6): q.append(vld(jA(sx, hb, k), JA, SQ, su, 64 * k))
    q += early
    for k in range(6):
        for h in range(4): q.append(valu("v_lshl_or_b32", jB(k).sub(h), jG(k, 2 * h + 1), 16, jG(k, 2 * h)))
    for sx in range(2):
        for k in range(6):
            for hb in range(2): q.append(mfma(jD(sx, hb), jA(sx, hb, k), jB(k), jD(sx, hb) if k else 0))
    for sx in range(2):
        for hb in range(2):
            for h in range(2): q.append(pk(jO(sx).sub(hb * 2 + h), jD(sx, hb).sub(2 * h), jD(sx, hb).sub(2 * h + 1)))
        q.append(vst(jO(sx), JL, SW, so, 1024 * sx, tag="jst"))
    q += late + [wait_vm("jst")]
    return q

JV0, JV1, JVA, JE, JO, JE2, JO2 = V(32), V(33), V(34), V(35), V(36), V(37), V(38)
sXO = S(61)
WOB = YB + 24576
def sdma(voff, srd_, soff, m0, off, tag="w"):
    return m0 + [dma(voff, srd_, soff, off, "", tag=tag)]
def sjob_m(early, late):
    q = [salu("s_mul_i32", sj, sJ, 43), salu("s_lshr_b32", sj, sj, 8), salu("s_mul_i32", ss, sj, 6), salu("s_sub_u32", ss, sJ, ss),
         salu("s_lshr_b32", so, sV, 1),
         salu("s_mul_i32", sa0, ss, 32 * 1152), salu("s_mul_i32", sT, so, 4 * 1152), salu("s_add_u32", sa0, sa0, sT),
         salu("s_lshl_b32", sb, sV, 5), salu("s_lshl_b32", sT, sj, 2), salu("s_add_u32", sb, sb, sT),
         salu("s_lshl_b32", so, so, 5), salu("s_and_b32", sT, sV, 1), salu("s_lshl_b32", sT, sT, 2),
         salu("s_add_u32", so, so, sT), salu("s_add_u32", so, so, 128),
         raw(f"s_cmp_eq_u32 {sj}, 2"), raw(f"s_cselect_b32 {sb}, {so}, {sb}"), salu("s_mul_i32", sb, sb, 1152), salu("s_add_u32", sb, sb, 384),
         salu("s_lshl_b32", so, sJ, 10), salu("s_add_u32", so, so, sOB), salu("s_lshl_b32", su, sXB, 1)]
    for u in range(3): q += sdma(JVA, SQ, sa0, [salu("s_add_u32", 'm0', sXB, YB + u * 896)], u * 128)
    for u in range(3):
        for h in range(2): q += sdma((JV0, JV1)[h], SQ, sb, [salu("s_add_u32", 'm0', su, YB + 12288 + h * 3072 + u * 896)], u * 128)
    q += early
    q += [valu("v_add_u32", JE2, su, JE), valu("v_add_u32", JO2, su, JO), wait_vm("w"), barrier()]
    for k in range(6):
        q += [dsr(jB(k), (JE2, JO2)[k & 1], 12288 + (k >> 1) * 1024)]
        for hb in range(2): q += [dsr(jA(0, hb, k), (JE, JO)[k & 1], hb * 6144 + (k >> 1) * 1024)]
    for k in range(6):
        for hb in range(2): q.append(mfma(jD(0, hb), jA(0, hb, k), jB(k), jD(0, hb) if k else 0))
    q.append(salu("s_mov_b32", sT, hex(SCALE)))
    for hb in range(2):
        for r in range(4): q.append(valu("v_mul_f32", jD(0, hb).sub(r), sT, jD(0, hb).sub(r)))
    for hb in range(2):
        for h in range(2): q.append(pk(jO(0).sub(hb * 2 + h), jD(0, hb).sub(2 * h), jD(0, hb).sub(2 * h + 1)))
    q.append(vst(jO(0), JL, SW, so, 0, tag="jst"))
    q += late + [wait_vm("jst")]
    return q

def sjob_n(early, late):
    W0, W1, T01, T2 = V(39), V(40), V(41), V(42)
    nB = lambda j, k: V(72 + (j * 6 + k) * 4, 4)
    nD = lambda j: V(216 + j * 4, 4)
    q = [salu("s_sub_u32", ss, sJ, 18), salu("s_mul_i32", sj, ss, 86), salu("s_lshr_b32", sj, sj, 8), salu("s_mul_i32", sT, sj, 3),
         salu("s_sub_u32", ss, ss, sT), salu("s_lshl_b32", ss, ss, 1), salu("s_lshr_b32", sT, sV, 1), salu("s_add_u32", ss, ss, sT),
         salu("s_mul_i32", sa0, ss, 32 * 1152), salu("s_and_b32", sT, sV, 1), salu("s_mul_i32", su, sT, 4 * 1152), salu("s_add_u32", sa0, sa0, su),
         salu("s_add_u32", sa0, sa0, 768),
         salu("s_lshl_b32", so, ss, 10), salu("s_lshl_b32", sT, sT, 3), salu("s_add_u32", so, so, sT), salu("s_add_u32", so, so, sXO),
         salu("s_mul_i32", sT, sj, 36864), salu("s_add_u32", so, so, sT), salu("s_add_u32", so, so, 18 * 1024),
         salu("s_mul_i32", sT, sj, 96), salu("s_min_u32", sb, sT, 256), salu("s_sub_u32", sj, sT, sb), salu("s_lshr_b32", sj, sj, 4),
         salu("s_mul_i32", sT, sV, 48 * 384), salu("s_add_u32", sb, sb, sT), salu("s_lshl_b32", su, sXB, 1),
         valu("v_lshrrev_b32", V(4), 3, LANE), valu("v_mul_u32_u24", V(4), 384, V(4)),
         valu("v_and_b32", V(5), 1, G_), valu("v_lshlrev_b32", V(5), 2, V(5)), valu("v_xor_b32", V(5), V(5), V(8)),
         valu("v_lshl_add_u32", W0, V(5), 4, V(4)), valu("v_xor_b32", V(5), 2, V(5)), valu("v_lshl_add_u32", W1, V(5), 4, V(4))]
    for d in range(6):
        q += [salu("s_add_u32", sT, sb, d * 8 * 384)] + sdma((W0, W1)[d & 1], SWO, sT, [salu("s_add_u32", 'm0', su, WOB + d * 1024)], 0)
    for u in range(3):
        for h in range(2): q += sdma((JV0, JV1)[h], SQ, sa0, [salu("s_add_u32", 'm0', su, YB + h * 3072 + u * 896)], u * 128)
    q += early
    q += [valu("v_lshrrev_b32", V(4), 2, N_), valu("v_lshl_add_u32", T01, G_, 3, V(4)), valu("v_lshlrev_b32", T01, 7, T01), valu("v_add_u32", T01, WOB, T01),
          valu("v_lshrrev_b32", V(4), 3, N_), valu("v_lshlrev_b32", V(4), 2, V(4)), valu("v_and_b32", V(5), 1, G_), valu("v_lshl_add_u32", V(4), V(5), 1, V(4)),
          valu("v_and_b32", V(5), 3, N_), valu("v_and_b32", TM(0), 1, N_), valu("v_lshl_add_u32", T2, TM(0), 3, T01),
          valu("v_lshrrev_b32", TM(0), 1, V(5)), valu("v_add_u32", TM(0), 4, TM(0)), valu("v_add_u32", TM(0), sj, TM(0)), valu("v_xor_b32", TM(0), TM(0), V(4)),
          valu("v_lshl_add_u32", T2, TM(0), 4, T2),
          valu("v_add_u32", V(5), sj, V(5)), valu("v_xor_b32", V(5), V(5), V(4)), valu("v_lshl_add_u32", T01, V(5), 4, T01),
          valu("v_add_u32", JE2, su, JE), valu("v_add_u32", JO2, su, JO), wait_vm("w"), barrier()]
    for k in range(6):
        q += [dsr(jA(0, 0, k), (JE2, JO2)[k & 1], (k >> 1) * 1024)]
        for j in range(3):
            for h in range(2):
                q += [dsr(nB(j, k).sub(2 * h, 2), T2 if j == 2 else T01, k * 4096 + h * 512 + (8 * j if j < 2 else 0), op="ds_read_b64_tr_b16")]
        if k >= 1:
            for j in range(3): q.append(mfma(nD(j), jA(0, 0, k - 1), nB(j, k - 1), nD(j) if k > 1 else 0))
    for j in range(3): q.append(mfma(nD(j), jA(0, 0, 5), nB(j, 5), nD(j)))
    for j in range(3):
        o = V(232 + 2 * j, 2)
        q += [pk(o.sub(0), nD(j).sub(0), nD(j).sub(1)), pk(o.sub(1), nD(j).sub(2), nD(j).sub(3)),
              salu("s_add_u32", sT, so, j * 6144), vst(o, JL, SW, sT, 0, tag="jst")]
    q += late + [wait_vm("jst")]
    return q

def flag_set(add=0, none=False):
    o = [] if none else [barrier()]
    o += [salu("s_add_u32", sT, sJ, add), salu("s_add_u32", sT, sT, sFO), valu("v_mov_b32", TM(15), 1),
          raw(f"s_cmp_eq_u32 {sV}, 0"), raw("s_cselect_b64 exec, 1, 0"),
          I(f"buffer_store_byte {TM(15)}, off, {SD}, {sT}", 'other', [TM(15)]), raw("s_mov_b64 exec, -1")]
    return o

PO, PMM, PMN = TM(4), TM(5), TM(6)
def poll_setup():
    return [valu("v_and_b32", PO, 7, LANE), valu("v_mov_b32", TM(7), "0x01010101"),
            valu("v_cmp_gt_u32", 'vcc', 4, PO), valu("v_cndmask_b32", PMM, 0, TM(7), 'vcc'),
            valu("v_cmp_lt_u32", 'vcc', 4, PO), valu("v_cndmask_b32", PMN, 0, TM(7), 'vcc'),
            valu("v_mov_b32", TM(7), "0x0101"), valu("v_cmp_eq_u32", 'vcc', 4, PO), valu("v_cndmask_b32", PMM, PMM, TM(7), 'vcc'),
            valu("v_lshlrev_b32", PO, 2, PO)]
def poll(name, isn):
    m = PMN if isn else PMM
    L = [f"  s_cmp_lg_u32 {sMODE}, 0", f"  s_cbranch_scc1 L_{name}_ok", f"  s_mov_b32 {sCNT}, {OPT['tmo']}", f"L_{name}:"]
    L += [f"  buffer_load_dword {TM(15)}, {PO}, {SD}, {sFO} offen sc1", "  s_waitcnt vmcnt(0)", f"  v_and_b32 {TM(7)}, {TM(15)}, {m}",
          f"  v_cmp_ne_u32 vcc, {TM(7)}, {m}", "  s_nop 1", f"  s_cmp_eq_u64 vcc, {OPT['forcefb']}"]
    L += [f"  s_cbranch_scc1 L_{name}_ok1"] + ([f"  s_sleep {OPT['sleep']}"] if OPT['sleep'] else []) + [
          f"  s_sub_u32 {sCNT}, {sCNT}, 1", f"  s_cmp_lg_u32 {sCNT}, 0", f"  s_cbranch_scc1 L_{name}", "  s_branch L_fallback", f"L_{name}_ok1:"]
    if not isn:
        L += [f"  v_and_b32 {TM(7)}, {TM(15)}, {PMN}", f"  v_cmp_ne_u32 vcc, {TM(7)}, {PMN}", "  s_nop 1", "  s_cmp_eq_u64 vcc, 0", f"  s_cselect_b32 {sMODE}, 2, 0"]
    L += [f"L_{name}_ok:"]
    return L

class Ctx:
    def __init__(self): self.nset = 0
    def newset(self):
        s = self.nset % 6; self.nset += 1; return s

def main_kernel():
    L = []
    p = stamp()
    p += [raw("s_load_dwordx8 s[44:51], s[0:1], 0"), raw("s_load_dwordx4 s[52:55], s[0:1], 32"),
          raw(f"s_getreg_b32 {sOB}, hwreg(HW_REG_XCC_ID, 0, 3)")]
    p += [raw("s_cmp_ge_u32 s2, 256"), raw("s_cbranch_scc1 L_end")]
    if OPT['permute']:
        p += [salu("s_lshr_b32", sT, S(2), 7), salu("s_lshl_b32", S(2), S(2), 1), salu("s_and_b32", S(2), S(2), 255), salu("s_or_b32", S(2), S(2), sT)]
    p += [valu("v_lshrrev_b32", WID, 6, V(0)), valu("v_and_b32", LANE, 63, V(0)),
          salu("s_lshr_b32", sJ, S(2), 3), salu("s_and_b32", sT, S(2), 7),
          valu("v_readfirstlane_b32", sV, WID),
          valu("v_and_b32", N_, 15, LANE), valu("v_lshrrev_b32", G_, 4, LANE),
          valu("v_lshrrev_b32", V(4), 2, N_), valu("v_and_b32", PM, 3, N_), valu("v_lshl_add_u32", PM, V(4), 3, PM),
          valu("v_mul_u32_u24", JA, 1152, PM), valu("v_lshl_add_u32", JA, G_, 4, JA), valu("v_lshlrev_b32", JL, 4, LANE),
          salu("s_mul_i32", sWG, sJ, 7 * 86016), salu("s_mul_i32", sT, sT, 28 * 384), salu("s_add_u32", sWG, sWG, sT),
          salu("s_lshl_b32", sFO, sOB, 5),
          salu("s_mul_i32", sXO, sOB, WSZ), salu("s_mul_i32", sT, sV, 36864), salu("s_add_u32", sOB, sXO, sT),
          salu("s_mov_b32", sMODE, 0),
          salu("s_mov_b32", s384, 384), salu("s_mov_b32", sM49, -49), salu("s_mov_b32", sM16128, -16128), salu("s_mov_b32", s83328, 83328),
          salu("s_mul_i32", sXB, sV, 3072)]
    p += [valu("v_lshrrev_b32", V(7), 1, N_), valu("v_xor_b32", V(7), G_, V(7)),
          valu("v_and_b32", V(8), 7, N_), valu("v_lshlrev_b32", V(8), 3, V(8)),
          valu("v_add_u32", V(4), V(8), V(7)), valu("v_xor_b32", V(5), 4, V(7)), valu("v_add_u32", V(5), V(8), V(5)),
          valu("v_lshlrev_b32", V(4), 4, V(4)), valu("v_lshlrev_b32", V(5), 4, V(5)),
          valu("v_lshrrev_b32", V(7), 3, N_), valu("v_mul_u32_u24", V(7), 3072, V(7)),
          valu("v_add_u32", XE, V(4), V(7)), valu("v_add_u32", XO, V(5), V(7)),
          valu("v_add_u32", XE2, 61440, XE), valu("v_add_u32", XO2, 61440, XO),
          valu("v_lshrrev_b32", V(7), 4, V(8)), valu("v_xor_b32", V(7), G_, V(7)),
          valu("v_add_u32", V(4), V(8), V(7)), valu("v_xor_b32", V(5), 4, V(7)), valu("v_add_u32", V(5), V(8), V(5)),
          valu("v_lshlrev_b32", V(4), 4, V(4)), valu("v_lshlrev_b32", V(5), 4, V(5)),
          valu("v_add_u32", XE12, XB + 24 * 3072, V(4)), valu("v_add_u32", XO12, XB + 24 * 3072, V(5))]
    p += [valu("v_add_u32", JE, YB, XE), valu("v_add_u32", JO, YB, XO)]
    p += [valu("v_lshrrev_b32", V(4), 3, LANE), valu("v_and_b32", V(5), 3, V(4)), valu("v_lshrrev_b32", V(4), 5, LANE), valu("v_lshl_add_u32", V(5), V(4), 3, V(5)),
          valu("v_mul_u32_u24", V(5), 1152, V(5)), valu("v_and_b32", V(8), 7, LANE), valu("v_xor_b32", V(4), G_, V(8)),
          valu("v_lshl_add_u32", JV0, V(4), 4, V(5)), valu("v_xor_b32", V(4), 4, V(4)), valu("v_lshl_add_u32", JV1, V(4), 4, V(5)),
          valu("v_add_u32", JV1, 16 * 1152, JV1), valu("v_and_b32", V(4), 1, WID), valu("v_cmp_eq_u32", 'vcc', 1, V(4)),
          valu("v_cndmask_b32", JVA, JV0, JV1, 'vcc')]
    p += [valu("v_and_b32", V(7), 1, WID), valu("v_lshl_add_u32", V(7), V(7), 2, G_),
          valu("v_and_b32", V(8), 7, LANE), valu("v_xor_b32", V(7), V(7), V(8)), valu("v_lshlrev_b32", V(7), 4, V(7)),
          valu("v_add_u32", V(7), sWG, V(7)),
          valu("v_lshrrev_b32", V(9), 3, LANE), valu("v_lshl_add_u32", V(9), WID, 3, V(9))]
    p += poll_setup()
    nxe, nxl = OPT['nxe'], OPT['nxl']
    for i in range(nxe + nxl):
        p += [valu("v_add_u32", TM(0), 32 * i, V(9))] + tokoff(XD(i), TM(0), V(7))
    p += [wait_lgkm0()] + stamp()
    p += srd(16, S(46), S(47), 221184) + srd(4, S(44), S(45), 19267584) + srd(56, S(48), S(49), 73728) + srd(8, S(54), S(55), 0x10000000) + srd(92, S(52), S(53), 256)
    p += [raw(f"buffer_load_dword {TM(15)}, off, {SD}, {sFO} sc1")]
    p += [raw(f"s_cmp_ge_u32 {sJ}, 30"), raw("s_cbranch_scc1 L_nojob"), raw(f"s_cmp_ge_u32 {sJ}, 18"), raw("s_cbranch_scc1 L_jobn")]
    L += finalize(p)
    early = flat(flat(xgroup(i) for i in range(nxe)))
    late = flat(flat(xgroup(i) for i in range(nxe, nxe + nxl)))
    L += finalize(sjob_m(early, late) + flag_set() + [raw("s_branch L_join")])
    L.append("L_jobn:")
    L += finalize(sjob_n(early, late) + flag_set(2) + [raw("s_branch L_join")])
    L.append("L_fallback:")
    L += finalize([salu("s_mov_b32", sMODE, 1), salu("s_mov_b32", sJ, 0), salu("s_add_u32", sOB, S(2), 8), salu("s_mul_i32", sOB, sOB, WSZ),
                   salu("s_mul_i32", sT, sV, 36864), salu("s_add_u32", sOB, sOB, sT), wait_vm0()])
    L.append("L_fb_m:")
    L += finalize(job_m([], []) + [salu("s_add_u32", sJ, sJ, 1), raw(f"s_cmp_lt_u32 {sJ}, 18"), raw("s_cbranch_scc1 L_fb_m")])
    L.append("L_fb_n:")
    L += finalize(job_n([], []) + [salu("s_add_u32", sJ, sJ, 1), raw(f"s_cmp_lt_u32 {sJ}, 27"), raw("s_cbranch_scc1 L_fb_n"), raw("s_branch L_pollm_ok")])
    L.append("L_nojob:")
    L += finalize(early + late)
    L.append("L_join:")
    p = stamp()
    for i in range(nxe + nxl, 6):
        p += [valu("v_add_u32", TM(0), 32 * i, V(9))] + tokoff(XD(i), TM(0), V(7))
    p += [salu("s_min_u32", sT, sV, 2), salu("s_lshl_b32", sM6, sT, 10), salu("s_add_u32", sM6, sM6, XB + 24 * 3072),
          salu("s_lshl_b32", sT, sT, 7), salu("s_add_u32", sT, sT, sWG),
          valu("v_xor_b32", V(7), G_, V(8)), valu("v_lshlrev_b32", V(7), 4, V(7)), valu("v_add_u32", V(7), sT, V(7)),
          valu("v_lshrrev_b32", TM(0), 3, LANE), valu("v_add_u32", TM(0), 192, TM(0))] + tokoff(XD(6), TM(0), V(7))
    for k in range(1, 9): p += [salu("s_mov_b32", sK(k), 4096 * k)]
    p += srd(12, S(50), S(51), 19267584)
    L += finalize(p)
    L += poll("pollm", False)
    def wload(dst, f):
        o = f * 1024
        return vld(dst, WV, SW, sK(o >> 12) if o >= 4096 else 0, o & 4095, OPT['wflags'])
    p = stamp() + [valu("v_add_u32", WV, sOB, JL)]
    pm = []
    for s in range(6):
        for j in range(3): pm.append(wload(MF(j, s), j * 6 + s))
    L += finalize(p + pm)
    L += poll("polln", True)
    p = stamp()
    p += [valu("v_add_u32", YL, YB, JL), valu("v_lshl_add_u32", YW1, WID, 10, YL),
          valu("v_lshrrev_b32", V(5), 1, WID), valu("v_lshl_add_u32", YW2, V(5), 10, YL), valu("v_and_b32", V(5), 1, WID),
          valu("v_lshl_add_u32", YW2, V(5), 3, YW2), valu("v_add_u32", YW2, 4096, YW2),
          valu("v_add_u32", PR, PB, JL), valu("v_lshl_add_u32", PW, WID, 11, PR)]
    misc = [salu("s_mov_b32", sNEG, hex(NEG)), valu("v_mov_b32", V(4), sNEG),
          [valu("v_cmp_eq_u32", 'vcc', 0, G_), valu("v_cndmask_b32", MA, 0, V(4), 'vcc'),
          raw("v_cndmask_b32_e64 v31, v4, 0, vcc", 'valu', [V(4), 'vcc'], [MB])]]
    for k in range(1, 5): misc.append(raw(f"v_cmp_le_u32_e64 {sGE(k)}, {k}, {N_}", 'valu', [N_], [sGE(k)]))
    misc += [valu("v_mul_u32_u24", SB, 96, WID), valu("v_lshl_add_u32", SB, G_, 4, SB), valu("v_add_u32", SB, sWG, SB),
          valu("v_lshlrev_b32", V(4), 3, G_), valu("v_sub_u32", DLT, 64, V(4)), valu("v_mov_b32", BIG, "0x7f000000")]
    tacalc = [[valu("v_add_u32", TM(8), 16 * T, N_)] + tokoff(TA(T), TM(8), SB, TM(9), TM(10)) for T in range(13)]
    vm0 = [f"x{i}" for i in range(nxe + nxl) for u in range(3)]
    p = pm_model(pm) + p
    nx0 = nxe + nxl
    if nx0 < 2:
        for i in range(nx0, 2): p += flat(xgroup(i))
        nx0 = 2
    p += [wait_vm("x1")] + stamp() + [barrier()]

    C = Ctx()
    LAT = OPT['lat']
    def ypost(st, T):
        a, b, c = ACC(st, 0), ACC(st, 1), ACC(st, 2)
        return [pk(a.sub(0), a.sub(0), a.sub(1)), pk(a.sub(1), a.sub(2), a.sub(3)), pk(a.sub(2), b.sub(0), b.sub(1)), pk(a.sub(3), b.sub(2), b.sub(3)),
                dsw(YW1, a, (T & 7) * 6144),
                pk(c.sub(0), c.sub(0), c.sub(1)), pk(c.sub(1), c.sub(2), c.sub(3)), dsw(YW2, c.sub(0, 2), (T & 7) * 6144)]
    def vpost(st, T):
        post = []
        for j in range(3):
            a = ACC(st, j)
            post += [pk(VB(j, T).sub(0), a.sub(0), a.sub(1)), pk(VB(j, T).sub(1), a.sub(2), a.sub(3))]
        return post
    def ym(st, T, s, j): return mfma(ACC(st, j), MF(j, s), XF(T, s), ACC(st, j) if s else 0)
    def vm(st, T, s, j): return mfma(ACC(st, j), XF(T, s), NF(j, s), ACC(st, j) if s else 0)
    def Smf(w):
        m = []
        for s in range(6):
            for kt in (1, 2, 0, 3):
                c = SA(kt) if (s or kt == 3 or (kt == 0 and w > 0)) else 0
                m.append(mfma(SA(kt), XF(3 * w + kt, s), YF(s), c))
        init = []
        if w > 0:
            for r in range(4): init.append(valu("v_mov_b32", SA(0).sub(r), MA if r < w else 0))
        for r in range(4): init.append(valu("v_mov_b32", SA(3).sub(r), MB if r <= w else sNEG))
        return m, init
    def softmax(w):
        s = [V(168 + k) for k in range(16)]
        m, t = TM(0), TM(1)
        o = [valu("v_max3_f32", m, s[4], s[5], s[6])]
        rest = [7, 8, 9, 10, 11, 0, 1, 2, 3, 12, 13, 14]
        for k in range(0, 12, 2): o.append(valu("v_max3_f32", m, m, s[rest[k]], s[rest[k + 1]]))
        o.append(valu("v_max_f32", m, m, s[15]))
        for sw in ("v_permlane32_swap_b32", "v_permlane16_swap_b32"):
            o += [valu("v_mov_b32", t, m), [swap(sw, m, t), valu("v_max_f32", m, m, t)]]
        for k in range(16): o.append(valu("v_sub_f32", s[k], s[k], m))
        for k in range(16): o.append(trans("v_exp_f32", s[k], s[k]))
        o.append(valu("v_add_f32", m, s[0], s[1]))
        for k in range(2, 16): o.append(valu("v_add_f32", m, m, s[k]))
        for sw in ("v_permlane32_swap_b32", "v_permlane16_swap_b32"):
            o += [valu("v_mov_b32", t, m), [swap(sw, m, t), valu("v_add_f32", m, m, t)]]
        o.append(trans("v_rcp_f32", m, m))
        for u in range(2):
            for k in range(8 * u, 8 * u + 8): o.append(valu("v_mul_f32", s[k], s[k], m))
            for h in range(4): o.append(pk(s[8 * u + h], s[8 * u + 2 * h], s[8 * u + 2 * h + 1]))
            o.append(dsw(PW, V(168 + 8 * u, 4), (w & 1) * 8192 + u * 1024))
        return o

    class Seg:
        def __init__(self):
            self.mf = []; self.posts = []; self.rd = []; self.sm = []; self.ld = []; self.st = []; self.first = {}
        def _use(self, st):
            self.first.setdefault(st, []).append(len(self.mf))
        def tiles(self, kind, Ts):
            sts = [C.newset() for _ in Ts]
            for st in sts: self._use(st)
            f = ym if kind == 'y' else vm
            ends = []; last = {}
            for s in range(6):
                for st, T in zip(sts, Ts):
                    for j in range(3): self.mf.append(f(st, T, s, j))
                    last[st] = len(self.mf) - 1
                ends.append(len(self.mf) - 1)
            for st, T in zip(sts, Ts):
                self.posts.append((last[st] + LAT, (ypost if kind == 'y' else vpost)(st, T), st, len(self.first[st])))
            return ends
        def O(self, w, q, gap):
            st = C.newset(); self._use(st)
            for u in range(2):
                for j in range(3): self.mf.append(mfma(ACC(st, j), VB(j, 3 * w + 2 * u, 4), PF(q, u), ACC(st, j) if u else 0))
            a, b, c = ACC(st, 0), ACC(st, 1), ACC(st, 2)
            d, e = PF(q, 0), PF(q, 1)
            T = 3 * w + q
            ad = TA(T); pre = []
            if q == 0 and w > 0:
                ad = e.sub(2); pre = [raw(f"v_cndmask_b32_e64 {ad}, {BIG}, {TA(T)}, {sGE(w)}", 'valu', [BIG, TA(T), sGE(w)], [ad])]
            if q == 3:
                ad = e.sub(2); pre = [raw(f"v_cndmask_b32_e64 {ad}, {TA(T)}, {BIG}, {sGE(w+1)}", 'valu', [BIG, TA(T), sGE(w + 1)], [ad])]
            post = [pk(d.sub(0), a.sub(0), a.sub(1)), pk(d.sub(1), a.sub(2), a.sub(3)), pk(d.sub(2), b.sub(0), b.sub(1)), pk(d.sub(3), b.sub(2), b.sub(3)),
                    pk(e.sub(0), c.sub(0), c.sub(1)), pk(e.sub(1), c.sub(2), c.sub(3))] + pre + [valu("v_add_u32", e.sub(3), ad, DLT)]
            sts = [vst(d, ad, SO, 0, 0, OPT['store_flags']), vst(e.sub(0, 2), e.sub(3), SO, 0, 0, OPT['store_flags'])]
            if gap is None:
                post = post[:4] + pre + [sts[0]] + post[4:6] + [post[-1], sts[1]]
            self.posts.append((len(self.mf) - 1 + LAT, post, st, len(self.first[st])))
            return None if gap is None else sts
        def build(self):
            ps = []
            for aft, post, st, k in self.posts:
                dl = self.first[st][k] - 1 if k < len(self.first[st]) else 10 ** 9
                ps += [Side(i, aft, dl) for i in post]
            return schedule(self.mf, [self.rd, self.sm, ps, self.ld], OPT['slots'])

    def yr_calc(w):
        return [salu("s_add_u32", sT, sV, 3 * w), salu("s_and_b32", sT, sT, 7), salu("s_mul_i32", sT, sT, 6144), valu("v_add_u32", YR, sT, YL)]
    sg = Seg()
    for s in range(6):
        for T in range(4): sg.rd.append(Side(xread1(T, s), -1, max(0, s * 12 + T * 3 - 24)))
    sg.tiles('y', [0, 1, 2, 3])
    ld = []
    for i in range(nx0, 4): ld += xgroup(i)
    nld = [[wload(NF(j, s), 18 + j * 6 + s)] for s in range(6) for j in range(3)]
    ld = nld + ld
    for k, l in enumerate(ld): sg.ld.append(Side(l, -1, 2 * k))
    sm0, init0 = Smf(0)
    for i in misc + init0: sg.sm.append(Side(i, 4))
    p += sg.build() + yr_calc(0) + stamp() + [wait_lgkm0(), barrier()]
    sg = Seg()
    for s in range(6): sg.rd.append(Side(dsr(YF(s), YR, s * 1024), -1, 0))
    sg.mf += sm0
    s1 = len(sg.mf)
    for i in softmax(0): sg.sm.append(Side(i, s1 - 1 + LAT))
    ends = sg.tiles('v', [0, 1, 2, 3])
    y0 = len(sg.mf)
    sg.rd.append(Side([wait_vm("x3"), barrier()], ends[1], ends[1] + 2))
    for s in range(6):
        for d in range(3): sg.rd.append(Side(xread1(4 + d, s), max(ends[s], ends[1]), y0 + d * 18 + s * 3 - 6))
    for d in range(3): sg.tiles('y', [4 + d])
    sg.tiles('v', [4])
    ld = []
    for i in range(max(nx0, 4), 7): ld += xgroup(i)
    for k, l in enumerate(ld): sg.ld.append(Side(l, 6 * k, 6 * k + 40))
    for t in tacalc[:4]:
        for i in t: sg.ld.append(Side(i, 0))
    p += sg.build() + yr_calc(1) + stamp() + [wait_lgkm0(), barrier()]
    for w in range(1, 4):
        sg = Seg()
        for s in range(6): sg.rd.append(Side(dsr(YF(s), YR, s * 1024), -1, 2 + s))
        sg.tiles('v', [3 * w + 2])
        sm, init = Smf(w)
        s0 = len(sg.mf)
        for i in init: sg.sm.append(Side(i, -1, s0 - 2))
        sg.mf += sm
        s1 = len(sg.mf)
        for q in range(4):
            for u in range(2): sg.rd.append(Side(dsr(PF(q, u), PR, ((w - 1) & 1) * 8192 + (q * 2 + u) * 1024), 8, s1 - 8 + 3 * (q * 2 + u)))
        for t in tacalc[3 * w + 1:3 * w + 4]:
            for i in t: sg.ld.append(Side(i, 0))
        sts = []
        for q in range(4): sts += sg.O(w - 1, q, 1)
        o1 = len(sg.mf)
        for i in softmax(w): sg.sm.append(Side(i, s1 - 1 + LAT))
        sg.tiles('v', [3 * w + 3])
        if w < 3:
            y0 = len(sg.mf)
            xb = s1 + OPT['xbar']
            sg.rd.append(Side([wait_vm({1: "x4", 2: "x6"}[w]), barrier()], xb, xb + 2))
            for d in range(3):
                for s in range(6): sg.rd.append(Side(xread1(3 * w + 4 + d, s), xb + 2 * (d * 6 + s), y0 + d * 18 + s * 3 - 10))
            for d in range(3): sg.tiles('y', [3 * w + 4 + d])
            sg.tiles('v', [3 * w + 4])
        gap = OPT['stgap'] if w < 3 else 2
        base = o1 + 20 if w < 3 else o1 + 6
        sg.stores = [Side(x, base + gap * k) for k, x in enumerate(sts)]
        body = build_with_stores(sg)
        p += body + (yr_calc(w + 1) if w < 3 else []) + stamp() + [wait_lgkm0(), barrier()]
    sg = Seg()
    for q in range(4):
        for u in range(2): sg.rd.append(Side(dsr(PF(q, u), PR, 8192 + (q * 2 + u) * 1024), -1, 0))
    for q in range(4): sg.O(3, q, None)
    p += sg.build() + stamp() + ([wait_vm0()] if OPT['stamp'] else []) + stamp() + stamp_out()
    st = {}
    o = finalize(p, st, vm0)
    L += [x for x in o if not x.startswith("  ;model")]
    print("main stats", st, file=sys.stderr)
    L.append("L_end:\n  s_endpgm")
    return L

def pm_model(pm):
    r = []
    for x in pm:
        y = I(";model", 'vld', [], [], tag=x.tag); y.writes = set(x.writes); r.append(y)
    return r

def build_with_stores(sg):
    ps = []
    for aft, post, st, k in sg.posts:
        dl = sg.first[st][k] - 1 if k < len(sg.first[st]) else 10 ** 9
        dl = min(dl, sg.stores[0].after) if post[0].writes & set(f"v{i}" for i in range(208, 240)) else dl
        ps += [Side(i, aft, dl) for i in post]
    return schedule(sg.mf, [sg.rd, sg.stores, sg.sm, ps, sg.ld], OPT['slots'])

def kdesc(name, vg, acc):
    return f""".p2align 6
.amdhsa_kernel {name}
  .amdhsa_next_free_vgpr {vg}
  .amdhsa_next_free_sgpr 102
  .amdhsa_accum_offset {acc}
  .amdhsa_group_segment_fixed_size 0
  .amdhsa_kernarg_size 48
  .amdhsa_user_sgpr_count 2
  .amdhsa_user_sgpr_kernarg_segment_ptr 1
  .amdhsa_system_sgpr_workgroup_id_x 1
.end_amdhsa_kernel"""

def build(path):
    K = "standalone__swin_window_attn__vision_kernel"
    L = ["; swin window attention, single fused kernel (generated)",
         f"; @launch grid=(256,1,1) block=(256,1,1) lds={LDS_TOT}",
         '.amdgcn_target "amdgcn-amd-amdhsa--gfx950"', ".text"]
    L += [f".globl {K}", ".p2align 8", f".type {K},@function", f"{K}:"] + main_kernel()
    L += ['.section .rodata,"a"', kdesc(K, 512, 256)]
    open(path, "w").write("\n".join(L) + "\n")

if __name__ == "__main__":
    for a in sys.argv[2:]:
        k, v = a.split("=", 1)
        OPT[k] = type(OPT[k])(v) if not isinstance(OPT[k], bool) else v == "1"
    build(sys.argv[1])
```
